```python
import torch

def _softmax(x, axis=-1):
    return torch.softmax(x, dim=axis)
def _gelu(x):
    return torch.nn.functional.gelu(x, approximate="tanh")
def _silu(x):
    return torch.nn.functional.silu(x)
def _sigmoid(x):
    return torch.sigmoid(x)
def _layernorm(x, axis=-1, eps=1e-5):
    m = x.mean(dim=axis, keepdim=True)
    v = x.var(dim=axis, keepdim=True, unbiased=False)
    return (x - m) / torch.sqrt(v + eps)
def _scatter_add(tgt, idx, src, axis=0):
    return tgt.clone().index_add_(axis, idx, src)
def _segment_sum(src, seg, n):
    out = torch.zeros((n,) + src.shape[1:], dtype=src.dtype)
    return out.index_add_(0, seg, src)
def _pad(x, pw):
    flat = tuple(v for pair in reversed(pw) for v in pair)
    return torch.nn.functional.pad(x, flat)

kernel_name = 'sequential_preLN__linear_attn_block__mixer_s_mlp__prompt'

def setup_inputs():

    _w = (lambda a: (lambda t: t.to(torch.bfloat16) if t.is_floating_point() else t)(torch.as_tensor(a)))
    def _A_setup():
        B, S, D = 1, 2048, 640
        return {
            "x": _w((lambda *s: torch.randn(*s, dtype=torch.bfloat16) * 0.05)(B, S, D)),
            "wqkv": _w((lambda *s: torch.randn(*s, dtype=torch.bfloat16) * 0.05)(D, 3 * D)),
            "wo": _w((lambda *s: torch.randn(*s, dtype=torch.bfloat16) * 0.05)(D, D)),
        }
    _A_in = _A_setup()

    def _B_setup():
        B, S, D, F = 1, 2048, 640, 1536
        return {
            "x":  _w((lambda *s: torch.randn(*s, dtype=torch.bfloat16) * 0.05)(B, S, D)),
            "w1": _w((lambda *s: torch.randn(*s, dtype=torch.bfloat16) * 3.2)(D, D) * (D ** -0.5)),
            "w2": _w((lambda *s: torch.randn(*s, dtype=torch.bfloat16) * 3.2)(D, D) * (D ** -0.5)),
            "w3": _w((lambda *s: torch.randn(*s, dtype=torch.bfloat16) * 3.2)(D, F) * (D ** -0.5)),
            "w4": _w((lambda *s: torch.randn(*s, dtype=torch.bfloat16) * 3.2)(F, D) * (F ** -0.5)),
        }
    _B_in = _B_setup()

    return {
        "A_x": _A_in["x"],
        "A_wqkv": _A_in["wqkv"],
        "A_wo": _A_in["wo"],
        "B_x": _B_in["x"],
        "B_w1": _B_in["w1"],
        "B_w2": _B_in["w2"],
        "B_w3": _B_in["w3"],
        "B_w4": _B_in["w4"],
    }

def reference(A_x, A_wqkv, A_wo, B_x, B_w1, B_w2, B_w3, B_w4):
    def _A_ref(x, wqkv, wo):
        B, S, D = x.shape
        H = 32; Dh = D // H
        qkv = (lambda x, *d: x.permute(*d))((x @ wqkv).reshape(B, S, 3, H, Dh), 2, 0, 3, 1, 4)
        q, k, v = qkv[0], qkv[1], qkv[2]
        phi = lambda t: torch.where(t > 0, t + 1, torch.exp(t)) + 1e-6
        pq, pk = phi(q), phi(k)
        kv = torch.einsum("bhsd,bhse->bhde", pk, v)
        z = torch.einsum("bhsd->bhd", pk)
        num = torch.einsum("bhqd,bhde->bhqe", pq, kv)
        den = torch.einsum("bhqd,bhd->bhq", pq, z)[..., None] + 1e-6
        o = num / den
        return (lambda x, *d: x.permute(*d))(o, 0, 2, 1, 3).reshape(B, S, D) @ wo

    def _B_ref(x, w1, w2, w3, w4):
        B, S, D = x.shape
        h = _gelu(_layernorm(x, axis=-1) @ w1)
        c = D // 4
        g0 = _pad(h[:, :, 0*c:1*c], ((0, 0), (1, 0), (0, 0)))[:, :S, :]
        g1 = _pad(h[:, :, 1*c:2*c], ((0, 0), (0, 1), (0, 0)))[:, 1:, :]
        g2 = _pad(h[:, :, 2*c:3*c], ((0, 0), (2, 0), (0, 0)))[:, :S, :]
        g3 = _pad(h[:, :, 3*c:   ], ((0, 0), (0, 2), (0, 0)))[:, 2:, :]
        hs = torch.concatenate([g0, g1, g2, g3], axis=-1) @ w2
        x1 = x + hs
        h2 = _gelu(_layernorm(x1, axis=-1) @ w3) @ w4
        return x1 + h2

    x = A_x
    h = x + _A_ref(_layernorm(x, axis=-1), A_wqkv, A_wo)
    h2 = h + _B_ref(_layernorm(h, axis=-1), B_w1, B_w2, B_w3, B_w4)
    return h2
```

```python
NAME = "sequential_preLN__linear_attn_block__mixer_s_mlp__prompt"
S, D, F = 2048, 640, 1536
off = 0
def alloc(n):
    global off
    o = off; off += (n + 255) // 256 * 256; return o
WF_QKV = alloc(1920*640*2); WF_W1 = alloc(640*640*2); WF_W2 = alloc(640*640*2)
WF_W3 = alloc(640*1536*2); WF_W4 = alloc(1536*640*2); WF_WP = alloc(640*640*2)
PQ = alloc(S*D*2); HB = alloc(S*D*2); LN2 = alloc(S*D*2); HH = alloc(S*D*2); X1 = alloc(S*D*2)
GB = alloc(S*F*2); PART = alloc(32*8*6480*4); ZB = alloc(640*4)
WS_SIZE = 268435456

out = []
def e(s): out.append("    " + s)
def lab(s): out.append(s + ":")
kernels = []

def begin(name):
    out.append(f".globl {name}\n.p2align 8\n.type {name},@function\n{name}:")
def srd(s, lo, hi, size, add=0):
    if add:
        e(f"s_add_u32 s{s}, s{lo}, {add}"); e(f"s_addc_u32 s{s+1}, s{hi}, 0")
    else:
        e(f"s_mov_b32 s{s}, s{lo}"); e(f"s_mov_b32 s{s+1}, s{hi}")
    e(f"s_and_b32 s{s+1}, s{s+1}, 0xffff")
    e(f"s_mov_b32 s{s+2}, {size}"); e(f"s_mov_b32 s{s+3}, 0x00020000")

def k_prep():
    n = "prep_kernel"; begin(n)
    segs = [(600, 8, 1920, 20, WF_QKV), (200, 32, 640, 20, WF_W1), (200, 40, 640, 20, WF_W2),
            (480, 48, 1536, 20, WF_W3), (480, 56, 640, 48, WF_W4)]
    tot = sum(x[0] for x in segs)
    e(f"s_cmp_ge_u32 s2, {tot}"); e("s_cbranch_scc1 prep_done")
    e("s_load_dwordx2 s[4:5], s[0:1], 80")
    start = 0
    for i, (cnt, karg, N, KS, dst) in enumerate(segs):
        e(f"s_cmp_ge_u32 s2, {start+cnt}"); e(f"s_cbranch_scc1 prep_s{i+1}")
        e(f"s_load_dwordx2 s[6:7], s[0:1], {karg}")
        e(f"s_sub_u32 s3, s2, {start}"); e(f"s_mov_b32 s20, {N*2}"); e(f"s_mov_b32 s21, {KS}")
        e(f"s_mov_b32 s22, {(1<<32)//KS+1}"); e(f"s_mov_b32 s23, {dst}"); e(f"s_mov_b32 s24, {N*KS*32*2}")
        e(f"s_mov_b32 s25, {1 if i==0 else 0}"); e("s_branch prep_go")
        lab(f"prep_s{i+1}"); start += cnt
    e("s_endpgm")
    lab("prep_go")
    e("s_waitcnt lgkmcnt(0)")
    e("s_mov_b32 s8, s6"); e("s_and_b32 s9, s7, 0xffff"); e("s_mov_b32 s10, s24"); e("s_mov_b32 s11, 0x00020000")
    e("s_add_u32 s12, s4, s23"); e("s_addc_u32 s13, s5, 0"); e("s_and_b32 s13, s13, 0xffff")
    e("s_mov_b32 s14, s24"); e("s_mov_b32 s15, 0x00020000")
    e("s_lshl_b32 s16, s3, 2"); e("v_lshrrev_b32 v1, 6, v0"); e("v_add_u32 v1, s16, v1")
    e("v_mul_hi_u32 v2, v1, s22")
    e("v_mul_lo_u32 v3, v2, s21"); e("v_sub_u32 v3, v1, v3")
    e("v_and_b32 v4, 15, v0"); e("v_lshl_add_u32 v4, v2, 4, v4")
    e("v_bfe_u32 v5, v0, 4, 2"); e("v_lshlrev_b32 v5, 3, v5"); e("v_lshl_add_u32 v5, v3, 5, v5")
    e("s_cmp_eq_u32 s25, 0"); e("s_cbranch_scc1 prep_nomap")
    e("v_subrev_u32 v6, 640, v4"); e("s_mov_b32 s26, 26843546"); e("v_mul_hi_u32 v7, v6, s26")
    e("v_mul_u32_u24 v8, 160, v7"); e("v_sub_u32 v8, v6, v8")
    e("v_mul_u32_u24 v9, 80, v7"); e("v_add_u32 v9, v9, v8"); e("v_add_u32 v9, 640, v9")
    e("v_add_u32 v10, 560, v9")
    e("v_cmp_gt_u32 vcc, 80, v8"); e("s_nop 1"); e("v_cndmask_b32 v9, v10, v9, vcc")
    e("v_cmp_gt_u32 vcc, 640, v4"); e("s_nop 1"); e("v_cndmask_b32 v4, v9, v4, vcc")
    lab("prep_nomap")
    e("v_mul_lo_u32 v6, v5, s20"); e("v_lshl_add_u32 v6, v4, 1, v6")
    for j in range(8):
        e(f"buffer_load_ushort v{16+j}, v6, s[8:11], 0 offen"); e("v_add_u32 v6, s20, v6")
    e("v_lshlrev_b32 v7, 4, v0"); e("s_lshl_b32 s16, s3, 12"); e("v_add_u32 v7, s16, v7")
    e("s_waitcnt vmcnt(0)")
    for j in range(4):
        e(f"v_lshl_or_b32 v{24+j}, v{17+2*j}, 16, v{16+2*j}")
    e("buffer_store_dwordx4 v[24:27], v7, s[12:15], 0 offen")
    lab("prep_done"); e("s_endpgm")
    kernels.append((n, tot, 256, 0, 32))

def row_reduce(v, t):
    for r in (8, 4, 2, 1):
        e("s_nop 1"); e(f"v_add_f32_dpp v{v}, v{v}, v{v} row_ror:{r} row_mask:0xf bank_mask:0xf")
def unpack(dst, src):
    for j in range(4):
        e(f"v_lshlrev_b32 v{dst+2*j}, 16, v{src+j}"); e(f"v_and_b32 v{dst+2*j+1}, 0xffff0000, v{src+j}")
def ln_regs(x, n, s, t):
    e(f"v_add_f32 v{s}, v{x}, v{x+1}")
    for i in range(2, n): e(f"v_add_f32 v{s}, v{s}, v{x+i}")
    row_reduce(s, t)
    e(f"v_mul_f32 v{s}, {1.0/(n*16)!r}, v{s}")
    for i in range(n): e(f"v_sub_f32 v{x+i}, v{x+i}, v{s}")
    e(f"v_mul_f32 v{s}, v{x}, v{x}")
    for i in range(1, n): e(f"v_fmac_f32 v{s}, v{x+i}, v{x+i}")
    row_reduce(s, t)
    e(f"v_mov_b32 v{t}, 0x3727c5ac"); e(f"v_fmac_f32 v{t}, {1.0/(n*16)!r}, v{s}")
    e(f"v_rsq_f32 v{t}, v{t}"); e("s_nop 0")
    for i in range(n): e(f"v_mul_f32 v{x+i}, v{x+i}, v{t}")
def pack(dst, x):
    for j in range(4): e(f"v_cvt_pk_bf16_f32 v{dst+j}, v{x+2*j}, v{x+2*j+1}")
def gelu(x, t):
    e(f"v_mul_f32 v{t}, v{x}, v{x}"); e(f"v_mov_b32 v{t+1}, 0x3f4c422a")
    e(f"v_fmac_f32 v{t+1}, 0x3d122279, v{t}")
    e(f"v_mul_f32 v{t+1}, v{t+1}, v{x}"); e(f"v_mul_f32 v{t+1}, 0xc038aa3b, v{t+1}")
    e(f"v_exp_f32 v{t+1}, v{t+1}"); e("s_nop 0"); e(f"v_add_f32 v{t+1}, 1.0, v{t+1}")
    e(f"v_rcp_f32 v{t+1}, v{t+1}"); e("s_nop 0"); e(f"v_mul_f32 v{x}, v{x}, v{t+1}")
def phi(x, t):
    e(f"v_mul_f32 v{t}, 0x3fb8aa3b, v{x}"); e(f"v_exp_f32 v{t}, v{t}"); e(f"v_add_f32 v{t+1}, 1.0, v{x}")
    e(f"v_cmp_lt_f32 vcc, 0, v{x}"); e("s_nop 1"); e(f"v_cndmask_b32 v{x}, v{t}, v{t+1}, vcc")
    e(f"v_add_f32 v{x}, 0x358637bd, v{x}")

def gemm(name, NW, NT, NCT, KC, pro, epi, wf, PF, src=None, dst=None, res=(), phases=1, outN=640):
    KS = KC // 32; RS = KC * 2
    begin(name)
    nwg = 32 * NCT
    L = name[:4]
    e(f"s_cmp_ge_u32 s2, {nwg}"); e(f"s_cbranch_scc1 {L}_done")
    e("s_load_dwordx2 s[4:5], s[0:1], 80"); e("s_load_dwordx2 s[6:7], s[0:1], 0"); e("s_load_dwordx2 s[28:29], s[0:1], 64")
    e(f"s_mul_hi_u32 s30, s2, {(1<<32)//NCT+1}")
    e(f"s_mul_i32 s31, s30, {NCT}"); e("s_sub_u32 s31, s2, s31")
    e("v_lshrrev_b32 v1, 6, v0"); e("s_nop 0"); e("v_readfirstlane_b32 s32, v1")
    e("v_and_b32 v1, 63, v0")
    e("s_waitcnt lgkmcnt(0)")
    srd(8, 4, 5, WS_SIZE)
    srd(12, 6, 7, S*D*2)
    srd(16, 28, 29, S*D*2)
    KST = KS * phases
    B0 = 14; NB = min(PF, KST); ACC = B0 + NB*NT*4; RES = ACC + 16*NT; AF = RES + 8*NT*len(res); PT = AF
    e(f"s_mul_i32 s33, s31, {NW}"); e("s_add_u32 s33, s33, s32"); e(f"s_mul_i32 s33, s33, {NT*KST*1024}")
    e(f"s_add_u32 s33, s33, {wf}"); e("v_lshlrev_b32 v2, 4, v1")
    def bload(ks):
        for j in range(NT):
            e(f"s_add_u32 s34, s33, {(j*KST+ks)*1024}")
            e(f"buffer_load_dwordx4 v[{B0+((ks%NB)*NT+j)*4}:{B0+((ks%NB)*NT+j)*4+3}], v2, s[8:11], s34 offen")
    for ks in range(NB): bload(ks)
    e("v_and_b32 v3, 15, v1"); e("v_lshrrev_b32 v4, 4, v1")
    e("s_lshl_b32 s35, s30, 6"); e("v_add_u32 v5, s35, v3"); e(f"s_mov_b32 s36, {outN*2}"); e("v_mul_lo_u32 v5, v5, s36")
    e(f"s_mul_i32 s36, s31, {NW*NT*32}"); e(f"s_mul_i32 s37, s32, {NT*32}"); e("s_add_u32 s36, s36, s37")
    e("v_lshl_add_u32 v5, v4, 3, v5"); e("v_add_u32 v5, s36, v5")
    for ri, (kind, base) in enumerate(res):
        for t in range(4):
            for j in range(NT):
                r = RES + ((ri*4+t)*NT+j)*2
                if kind == 'x':
                    e(f"s_mov_b32 s34, {t*16*outN*2+j*32}"); e(f"buffer_load_dwordx2 v[{r}:{r+1}], v5, s[12:15], s34 offen")
                else:
                    e(f"s_mov_b32 s34, {base+t*16*outN*2+j*32}"); e(f"buffer_load_dwordx2 v[{r}:{r+1}], v5, s[8:11], s34 offen")
    e("v_and_b32 v6, 7, v1"); e("v_xor_b32 v7, v4, v6"); e("v_or_b32 v6, 4, v4"); e("v_and_b32 v3, 7, v1"); e("v_xor_b32 v6, v6, v3")
    e("v_and_b32 v3, 15, v1"); e(f"v_mul_u32_u24 v3, {RS}, v3"); e("v_lshl_add_u32 v7, v7, 4, v3"); e("v_lshl_add_u32 v6, v6, 4, v3")
    for a in range(16*NT): e(f"v_mov_b32 v{ACC+a}, 0")
    for ph in range(phases):
        e("s_cmp_ge_u32 s32, 4"); e(f"s_cbranch_scc1 {L}_psk{ph}")
        pro(ph, PT, RS, L)
        lab(f"{L}_psk{ph}")
        e("s_waitcnt vmcnt(0) lgkmcnt(0)"); e("s_barrier")
        def aread(ks, buf):
            for t in range(4):
                o = t*16*RS + (ks >> 1)*128; base = 7 if ks % 2 == 0 else 6
                if o > 65535:
                    e(f"v_add_u32 v3, {t*16*RS}, v{base}"); e(f"ds_read_b128 v[{AF+buf*16+t*4}:{AF+buf*16+t*4+3}], v3 offset:{(ks>>1)*128}")
                else:
                    e(f"ds_read_b128 v[{AF+buf*16+t*4}:{AF+buf*16+t*4+3}], v{base} offset:{o}")
        aread(0, 0)
        for ks in range(KS):
            g = ph*KS + ks; buf = ks % 2
            if ks+1 < KS: aread(ks+1, 1 - buf)
            if NB < KST:
                rem = min(NB-1, KST-1-g); e(f"s_waitcnt vmcnt({rem*NT}) lgkmcnt({4 if ks+1<KS else 0})")
            else:
                e(f"s_waitcnt lgkmcnt({4 if ks+1<KS else 0})")
            for t in range(4):
                for j in range(NT):
                    b = B0 + ((g % NB)*NT+j)*4; a = AF+buf*16+t*4; c = ACC+(t*NT+j)*4
                    if epi == 'kv': e(f"v_mfma_f32_16x16x32_bf16 v[{c}:{c+3}], v[{a}:{a+3}], v[{b}:{b+3}], v[{c}:{c+3}]")
                    else: e(f"v_mfma_f32_16x16x32_bf16 v[{c}:{c+3}], v[{b}:{b+3}], v[{a}:{a+3}], v[{c}:{c+3}]")
            if NB < KST and g+NB < KST: bload(g+NB)
        if ph+1 < phases: e("s_barrier")
    e("s_nop 7"); e("s_nop 7")
    T = PT
    if epi == 'kv':
        kv_epilogue(ACC, AF, T, L)
    else:
        for t in range(4):
            for j in range(NT):
                c = ACC+(t*NT+j)*4
                for i in range(4):
                    if epi == 'gelu': gelu(c+i, T)
                    elif epi == 'phi': phi(c+i, T)
                    for ri in range(len(res)):
                        r = RES + ((ri*4+t)*NT+j)*2 + i//2
                        if i % 2 == 0: e(f"v_lshlrev_b32 v{T}, 16, v{r}")
                        else: e(f"v_and_b32 v{T}, 0xffff0000, v{r}")
                        e(f"v_add_f32 v{c+i}, v{c+i}, v{T}")
                e(f"v_cvt_pk_bf16_f32 v{c}, v{c}, v{c+1}"); e(f"v_cvt_pk_bf16_f32 v{c+1}, v{c+2}, v{c+3}")
                if dst is None:
                    e(f"s_mov_b32 s34, {t*16*outN*2+j*32}"); e(f"buffer_store_dwordx2 v[{c}:{c+1}], v5, s[16:19], s34 offen")
                else:
                    e(f"s_mov_b32 s34, {dst+t*16*outN*2+j*32}"); e(f"buffer_store_dwordx2 v[{c}:{c+1}], v5, s[8:11], s34 offen")
    lab(f"{L}_done"); e("s_endpgm")
    kernels.append((name, nwg, NW*64, 64*RS, 256))

def kv_epilogue(ACC, AF, T, L):
    e("s_barrier")
    for j in range(2):
        e(f"s_lshl_b32 s34, s32, 1"); e(f"s_add_u32 s34, s34, {j}"); e("s_cmp_lt_u32 s34, 5"); e("s_cselect_b64 s[38:39], -1, 0")
        e("v_and_b32 v3, 15, v1"); e("s_lshl_b32 s34, s34, 4"); e("v_add_u32 v3, s34, v3"); e("v_mul_u32_u24 v3, 144, v3")
        e("v_lshl_add_u32 v3, v4, 3, v3")
        for t in range(4):
            c = ACC+(t*2+j)*4
            for i in range(4):
                e(f"v_mov_b32 v{T+2}, v{c+i}"); phi(c+i, T); e(f"v_cndmask_b32 v{c+i}, v{T+2}, v{c+i}, s[38:39]")
            e(f"v_cvt_pk_bf16_f32 v{c}, v{c}, v{c+1}"); e(f"v_cvt_pk_bf16_f32 v{c+1}, v{c+2}, v{c+3}")
            e(f"ds_write_b64 v3, v[{c}:{c+1}] offset:{t*32}")
    e("s_waitcnt lgkmcnt(0)"); e("s_barrier")
    e("v_and_b32 v3, 15, v1"); e("v_mul_u32_u24 v3, 144, v3"); e("v_lshl_add_u32 v3, v4, 4, v3")
    e("s_mul_i32 s34, s32, 2304"); e(f"v_add_u32 v6, s34, v3")
    e(f"ds_read_b128 v[{AF}:{AF+3}], v6"); e(f"ds_read_b128 v[{AF+4}:{AF+7}], v6 offset:64")
    e("s_lshl_b32 s36, s30, 3"); e("s_add_u32 s36, s36, s31"); e("s_mul_i32 s36, s36, 25920"); e(f"s_add_u32 s36, s36, {PART}")
    for d in (0, 1, 2, 3):
        for a in range(4): e(f"v_mov_b32 v{ACC+a}, 0")
        if d < 3:
            e(f"s_add_u32 s37, s32, {d}"); e("s_max_u32 s37, s37, 1"); e("s_sub_u32 s37, s37, 1"); e("s_min_u32 s37, s37, 4")
            e("s_add_u32 s34, s37, 5"); e("s_mul_i32 s34, s34, 2304"); e("v_add_u32 v7, s34, v3")
            e(f"ds_read_b128 v[{AF+8}:{AF+11}], v7"); e(f"ds_read_b128 v[{AF+12}:{AF+15}], v7 offset:64")
        else:
            for a in range(8): e(f"v_mov_b32 v{AF+8+a}, 0x3f803f80")
        e("s_waitcnt lgkmcnt(0)"); e("s_nop 1")
        e(f"v_mfma_f32_16x16x32_bf16 v[{ACC}:{ACC+3}], v[{AF}:{AF+3}], v[{AF+8}:{AF+11}], v[{ACC}:{ACC+3}]")
        e(f"v_mfma_f32_16x16x32_bf16 v[{ACC}:{ACC+3}], v[{AF+4}:{AF+7}], v[{AF+12}:{AF+15}], v[{ACC}:{ACC+3}]")
        e("s_mul_i32 s34, s32, 5120"); e("v_mul_u32_u24 v7, 1280, v4"); e("v_add_u32 v7, s34, v7")
        if d < 3:
            e("v_and_b32 v8, 15, v1"); e("v_lshl_add_u32 v7, v8, 2, v7"); e("s_lshl_b32 s34, s37, 6"); e("v_add_u32 v7, s34, v7")
            e("s_nop 7"); e("s_nop 3")
            for i in range(4): e(f"buffer_store_dword v{ACC+i}, v7, s[8:11], s36 offen offset:{i*320}")
        else:
            e("s_lshl_b32 s34, s32, 6"); e("v_lshlrev_b32 v7, 4, v4"); e("v_add_u32 v7, s34, v7"); e("v_add_u32 v7, 25600, v7")
            e("s_nop 7"); e("s_nop 3")
            for i in range(4): e(f"buffer_store_dword v{ACC+i}, v7, s[8:11], s36 offen offset:{i*4}")

def ld_rows(PT, srd_, base, RSG, coloff=0):
    e("v_and_b32 v3, 15, v1"); e("s_lshl_b32 s34, s32, 4"); e("s_add_u32 s34, s34, s35"); e("v_add_u32 v8, s34, v4")
    e(f"s_mov_b32 s34, {RSG}"); e("v_mul_lo_u32 v8, v8, s34"); e("v_lshl_add_u32 v8, v3, 4, v8")
def lds_waddr(RS):
    e("s_lshl_b32 s34, s32, 4"); e("v_add_u32 v9, s34, v4"); e(f"v_mul_u32_u24 v9, {RS}, v9")
def pro_ln(kind, base, twice=False, wr_ln2=False):
    def f(ph, PT, RS, L):
        ld_rows(PT, None, base, 1280); lds_waddr(RS)
        for p in range(4):
            for i in range(5):
                e(f"s_mov_b32 s34, {base+p*4*1280+i*256}")
                e(f"buffer_load_dwordx4 v[{PT+(p*5+i)*4}:{PT+(p*5+i)*4+3}], v8, s[{12 if kind=='x' else 8}:{15 if kind=='x' else 11}], s34 offen")
        X = PT+80
        for p in range(4):
            e(f"s_waitcnt vmcnt({(3-p)*5})")
            for i in range(5): unpack(X+i*8, PT+(p*5+i)*4)
            ln_regs(X, 40, X+40, X+41)
            if twice:
                for i in range(5): pack(PT+(p*5+i)*4, X+i*8)
                if wr_ln2:
                    e("s_cmp_lg_u32 s31, 0"); e(f"s_cbranch_scc1 {L}_nw{p}")
                    for i in range(5):
                        e(f"s_mov_b32 s34, {LN2+p*4*1280+i*256}"); e(f"buffer_store_dwordx4 v[{PT+(p*5+i)*4}:{PT+(p*5+i)*4+3}], v8, s[8:11], s34 offen")
                    lab(f"{L}_nw{p}")
                for i in range(5): unpack(X+i*8, PT+(p*5+i)*4)
                ln_regs(X, 40, X+40, X+41)
            e(f"v_and_b32 v3, 15, v1"); e(f"v_add_u32 v10, {4*(p&1)}, v4"); e("v_xor_b32 v3, v3, v10"); e("v_lshl_add_u32 v3, v3, 4, v9")
            for i in range(5):
                pack(X+i*8, X+i*8)
                e(f"ds_write_b128 v3, v[{X+i*8}:{X+i*8+3}] offset:{p*4*RS+i*256}")
            e("s_waitcnt vmcnt(0)" if wr_ln2 else "s_nop 0")
    return f
def pro_copy(base, RSG, shift=False):
    def f(ph, PT, RS, L):
        nch = RS // 256
        ld_rows(PT, None, base, RSG); lds_waddr(RS)
        if shift: srd(20, 4, 5, S*D*2, HH)
        for p in range(4):
            e(f"v_and_b32 v3, 15, v1"); e(f"v_add_u32 v10, {4*(p&1)}, v4"); e("v_xor_b32 v3, v3, v10"); e("v_lshl_add_u32 v3, v3, 4, v9")
            for i in range(nch):
                r = PT+i*4
                if shift:
                    e(f"v_and_b32 v10, 15, v1"); e(f"v_add_u32 v10, {16*i}, v10")
                    e("v_mov_b32 v11, -1280"); e("v_cmp_le_u32 vcc, 20, v10"); e("v_mov_b32 v12, 1280"); e("v_cndmask_b32 v11, v11, v12, vcc")
                    e("v_cmp_le_u32 vcc, 40, v10"); e("v_mov_b32 v12, -2560"); e("v_cndmask_b32 v11, v11, v12, vcc")
                    e("v_cmp_le_u32 vcc, 60, v10"); e("v_mov_b32 v12, 2560"); e("v_cndmask_b32 v11, v11, v12, vcc")
                    e(f"v_add_u32 v11, v11, v8"); e(f"v_add_u32 v11, {p*4*1280+i*256}, v11")
                    e(f"buffer_load_dwordx4 v[{r}:{r+3}], v11, s[20:23], 0 offen")
                else:
                    e(f"s_mov_b32 s34, {base+ph*RS+p*4*RSG+i*256}"); e(f"buffer_load_dwordx4 v[{r}:{r+3}], v8, s[8:11], s34 offen")
            e("s_waitcnt vmcnt(0)")
            for i in range(nch):
                e(f"ds_write_b128 v3, v[{PT+i*4}:{PT+i*4+3}] offset:{p*4*RS+i*256}")
            e("s_waitcnt lgkmcnt(0)")
    return f
def pro_attn(ph, PT, RS, L):
    Z = PT; P = PT+20; A = PT+100
    e("v_and_b32 v3, 31, v0"); e("v_lshrrev_b32 v9, 5, v0"); e("v_mul_u32_u24 v8, 80, v3")
    for q in range(5):
        e(f"s_mov_b32 s34, {ZB+q*16}"); e(f"buffer_load_dwordx4 v[{Z+q*4}:{Z+q*4+3}], v8, s[8:11], s34 offen")
    e("v_add_u32 v8, s35, v9"); e("v_mul_u32_u24 v8, 1280, v8"); e("v_mul_u32_u24 v10, 40, v3"); e("v_add_u32 v8, v8, v10")
    for i in range(8):
        for q in range(5):
            e(f"s_mov_b32 s34, {PQ+i*8*1280+q*8}"); e(f"buffer_load_dwordx2 v[{P+i*10+q*2}:{P+i*10+q*2+1}], v8, s[8:11], s34 offen")
    for q in range(5):
        e(f"v_add_u32 v11, {8*q}, v10"); e("v_lshrrev_b32 v12, 4, v11"); e("v_xor_b32 v12, v12, v9"); e("v_and_b32 v11, 8, v11")
        e(f"v_lshl_add_u32 v{A+q}, v12, 4, v11"); e(f"v_mul_u32_u24 v12, 1280, v9"); e(f"v_add_u32 v{A+q}, v{A+q}, v12")
    e("s_waitcnt vmcnt(0)")
    X = PT+108
    for i in range(8):
        for q in range(10):
            e(f"v_lshlrev_b32 v{X+2*q}, 16, v{P+i*10+q}"); e(f"v_and_b32 v{X+2*q+1}, 0xffff0000, v{P+i*10+q}")
        e(f"v_mov_b32 v{X+20}, 0x358637bd")
        for d in range(20): e(f"v_fmac_f32 v{X+20}, v{X+d}, v{Z+d}")
        e(f"v_rcp_f32 v{X+20}, v{X+20}"); e("s_nop 0")
        for d in range(20): e(f"v_mul_f32 v{X+d}, v{X+d}, v{X+20}")
        for q in range(5):
            e(f"v_cvt_pk_bf16_f32 v{X+4*q}, v{X+4*q}, v{X+4*q+1}"); e(f"v_cvt_pk_bf16_f32 v{X+4*q+1}, v{X+4*q+2}, v{X+4*q+3}")
            if i >= 4:
                e(f"v_add_u32 v12, 40960, v{A+q}"); e(f"ds_write_b64 v12, v[{X+4*q}:{X+4*q+1}] offset:{(i-4)*10240}")
            else: e(f"ds_write_b64 v{A+q}, v[{X+4*q}:{X+4*q+1}] offset:{i*10240}")

def k_red():
    n = "red_kernel"; begin(n)
    e("s_cmp_ge_u32 s2, 32"); e("s_cbranch_scc1 red_done")
    e("s_load_dwordx2 s[4:5], s[0:1], 80"); e("s_load_dwordx2 s[6:7], s[0:1], 16"); e("s_waitcnt lgkmcnt(0)")
    srd(8, 4, 5, WS_SIZE); srd(12, 6, 7, 640*640*2)
    e("s_lshr_b32 s20, s2, 2"); e("s_and_b32 s21, s2, 3"); e("s_mul_i32 s22, s20, 25920"); e(f"s_add_u32 s22, s22, {PART}")
    e("s_mov_b32 s23, 214748365"); e("v_mul_hi_u32 v1, v0, s23"); e("v_mul_u32_u24 v2, 20, v1"); e("v_sub_u32 v2, v0, v2")
    e("s_mul_i32 s24, s21, 20"); e("v_add_u32 v3, s24, v1"); e("v_mul_u32_u24 v3, 80, v3"); e("v_add_u32 v3, v3, v2"); e("v_add_u32 v3, s24, v3"); e("v_lshlrev_b32 v3, 2, v3")
    e("v_add_u32 v4, s24, v2"); e("v_lshlrev_b32 v4, 2, v4"); e("v_add_u32 v4, 25600, v4")
    e("v_cmp_gt_u32 vcc, 400, v0"); e("s_nop 1"); e("v_cndmask_b32 v3, v4, v3, vcc")
    e("v_mov_b32 v5, 0")
    e("v_cmp_gt_u32 vcc, 420, v0"); e("s_and_saveexec_b64 s[26:27], vcc"); e("s_cbranch_execz red_l")
    for rb in range(32):
        e(f"s_add_u32 s25, s22, {rb*8*25920}"); e(f"buffer_load_dword v{8+rb}, v3, s[8:11], s25 offen")
    e("s_waitcnt vmcnt(0)")
    for rb in range(32): e(f"v_add_f32 v5, v5, v{8+rb}")
    e("v_lshlrev_b32 v6, 2, v0"); e("ds_write_b32 v6, v5")
    e("v_cmp_le_u32 vcc, 400, v0"); e("s_and_saveexec_b64 s[28:29], vcc")
    e("s_mul_i32 s25, s2, 80"); e(f"s_add_u32 s25, s25, {ZB-1600}"); e("buffer_store_dword v5, v6, s[8:11], s25 offen")
    e("s_mov_b64 exec, s[28:29]")
    lab("red_l"); e("s_mov_b64 exec, s[26:27]"); e("s_waitcnt lgkmcnt(0)"); e("s_barrier")
    e("s_mul_i32 s25, s2, 25600"); e("v_lshlrev_b32 v6, 1, v0")
    for ee in range(20): (e(f"s_add_u32 s26, s25, {ee*1280}"), e(f"buffer_load_ushort v{8+ee}, v6, s[12:15], s26 offen"))
    e("s_waitcnt vmcnt(0)")
    for ee in range(20): e(f"v_lshlrev_b32 v{8+ee}, 16, v{8+ee}")
    e("v_lshrrev_b32 v1, 4, v0"); e("v_mul_u32_u24 v1, 20480, v1"); e("v_and_b32 v2, 15, v0"); e("v_lshl_add_u32 v1, v2, 4, v1")
    e("v_mov_b32 v7, 0")
    for d in range(20):
        e("v_mov_b32 v30, 0")
        for q in range(5):
            e(f"ds_read_b128 v[{32+q*4}:{35+q*4}], v7 offset:{d*80+q*16}")
        e("s_waitcnt lgkmcnt(0)")
        for ee in range(20): e(f"v_fmac_f32 v30, v{32+ee}, v{8+ee}")
        e("v_cvt_pk_bf16_f32 v30, v30, v30")
        e(f"s_mul_i32 s25, s2, 20"); e(f"s_add_u32 s25, s25, {d}")
        e("s_lshr_b32 s26, s25, 5"); e("s_lshl_b32 s26, s26, 10"); e("s_bfe_u32 s27, s25, 0x20003"); e("s_lshl_b32 s27, s27, 8")
        e("s_add_u32 s26, s26, s27"); e("s_and_b32 s27, s25, 7"); e("s_lshl_b32 s27, s27, 1"); e("s_add_u32 s26, s26, s27"); e(f"s_add_u32 s26, s26, {WF_WP}")
        e("buffer_store_short v30, v1, s[8:11], s26 offen")
    lab("red_done"); e("s_endpgm")
    kernels.append((n, 32, 640, 2048, 64))

k_prep()

gemm("qq_kernel", 5, 2, 4, 640, pro_ln('x', 0), 'phi', WF_QKV, 8, dst=PQ)
gemm("kv_kernel", 5, 2, 8, 640, pro_ln('x', 0), 'kv', WF_QKV + 40*20*1024, 8)
k_red()
gemm("attn_kernel", 5, 1, 8, 640, pro_attn, None, WF_WP, 20, dst=HB, res=(('x', 0),))
gemm("mix1_kernel", 5, 1, 8, 640, pro_ln('w', HB, True, True), 'gelu', WF_W1, 20, dst=HH)
gemm("mix2_kernel", 5, 1, 8, 640, pro_copy(HH, 1280, True), None, WF_W2, 20, dst=X1, res=(('w', LN2),))
gemm("mlp1_kernel", 6, 1, 16, 640, pro_ln('w', X1), 'gelu', WF_W3, 20, dst=GB, outN=1536)
gemm("mlp2_kernel", 5, 1, 8, 768, pro_copy(GB, 3072), None, WF_W4, 16, dst=None, res=(('w', X1), ('w', HB)), phases=2)

hdr = open("cdna_kernels/%s.s.ref" % NAME).read().split("; Override launch")[0]
txt = hdr
for (n, g, b, l, v) in kernels:
    txt += f"; @launch kernel={n} grid=({g},1,1) block=({b},1,1) lds={l}\n"
txt += '.amdgcn_target "amdgcn-amd-amdhsa--gfx950"\n.text\n' + "\n".join(out) + '\n.section .rodata,"a"\n'
for (n, g, b, l, v) in kernels:
    txt += f""".p2align 6
.amdhsa_kernel {n}
  .amdhsa_next_free_vgpr {v}
  .amdhsa_next_free_sgpr 102
  .amdhsa_accum_offset {v}
  .amdhsa_group_segment_fixed_size 0
  .amdhsa_kernarg_size 88
  .amdhsa_user_sgpr_count 2
  .amdhsa_user_sgpr_kernarg_segment_ptr 1
  .amdhsa_system_sgpr_workgroup_id_x 1
.end_amdhsa_kernel
"""
open("cdna_kernels/%s.s" % NAME, "w").write(txt)
```
